```python
import torch

def _softmax(x, axis=-1):
    return torch.softmax(x, dim=axis)

def _gelu(x):
    return torch.nn.functional.gelu(x, approximate='tanh')

def _silu(x):
    return torch.nn.functional.silu(x)

def _sigmoid(x):
    return torch.sigmoid(x)

def _layernorm(x, axis=-1, eps=1e-05):
    m = x.mean(dim=axis, keepdim=True)
    v = x.var(dim=axis, keepdim=True, unbiased=False)
    return (x - m) / torch.sqrt(v + eps)

def _scatter_add(tgt, idx, src, axis=0):
    return tgt.clone().index_add_(axis, idx, src)

def _segment_sum(src, seg, n):
    out = torch.zeros((n,) + src.shape[1:], dtype=src.dtype)
    return out.index_add_(0, seg, src)

def _pad(x, pw):
    flat = tuple((v for pair in reversed(pw) for v in pair))
    return torch.nn.functional.pad(x, flat)
kernel_name = 'adaLN_cond__ssm_conv_s4__geglu_ffn__prompt'

def setup_inputs():

    _w = lambda a: (lambda t: t.to(torch.bfloat16) if t.is_floating_point() else t)(torch.as_tensor(a))

    def _A_setup():
        B, L, D, N = (1, 2048, 576, 128)
        A_re = -(lambda _x: torch.exp(torch.as_tensor(_x)))((lambda *s: torch.randn(*s, dtype=torch.bfloat16) * 3.2)(D, N))
        A_im = torch.pi * (lambda *s: torch.randn(*s, dtype=torch.bfloat16) * 0.1)(D, N)
        B_re = (lambda *s: torch.randn(*s, dtype=torch.bfloat16) * 0.2)(D, N)
        B_im = (lambda *s: torch.randn(*s, dtype=torch.bfloat16) * 0.2)(D, N)
        C_re = (lambda *s: torch.randn(*s, dtype=torch.bfloat16) * 0.2)(D, N)
        C_im = (lambda *s: torch.randn(*s, dtype=torch.bfloat16) * 0.2)(D, N)
        log_dt = (lambda *s: torch.randn(*s, dtype=torch.bfloat16) * 0.1)(D) * 0.5 - 4.0
        Dskip = (lambda *s: torch.randn(*s, dtype=torch.bfloat16) * 0.1)(D)
        return {'u': _w((lambda *s: torch.randn(*s, dtype=torch.bfloat16) * 0.05)(B, L, D)), 'A_re': _w(A_re), 'A_im': _w(A_im), 'B_re': _w(B_re), 'B_im': _w(B_im), 'C_re': _w(C_re), 'C_im': _w(C_im), 'log_dt': _w(log_dt), 'Dskip': _w(Dskip)}
    _A_in = _A_setup()

    def _B_setup():
        B, S, D, F = (1, 2048, 576, 4608)
        return {'x': _w((lambda *s: torch.randn(*s, dtype=torch.bfloat16) * 0.05)(B, S, D)), 'w_gate': _w((lambda *s: torch.randn(*s, dtype=torch.bfloat16) * 0.05)(D, F)), 'w_up': _w((lambda *s: torch.randn(*s, dtype=torch.bfloat16) * 0.05)(D, F)), 'w_down': _w((lambda *s: torch.randn(*s, dtype=torch.bfloat16) * 0.05)(F, D))}
    _B_in = _B_setup()
    return {'A_u': _A_in['u'], 'A_A_re': _A_in['A_re'], 'A_A_im': _A_in['A_im'], 'A_B_re': _A_in['B_re'], 'A_B_im': _A_in['B_im'], 'A_C_re': _A_in['C_re'], 'A_C_im': _A_in['C_im'], 'A_log_dt': _A_in['log_dt'], 'A_Dskip': _A_in['Dskip'], 'B_x': _B_in['x'], 'B_w_gate': _B_in['w_gate'], 'B_w_up': _B_in['w_up'], 'B_w_down': _B_in['w_down'], 'c': _w((lambda *s: torch.randn(*s, dtype=torch.bfloat16) * 0.1)(1, 576) * 8.0), 'w_mod': _w((lambda *s: torch.randn(*s, dtype=torch.bfloat16) * 0.1)(576, 6 * 576) * 576 ** (-0.5) * 8.0)}

def reference(A_u, A_A_re, A_A_im, A_B_re, A_B_im, A_C_re, A_C_im, A_log_dt, A_Dskip, B_x, B_w_gate, B_w_up, B_w_down, c, w_mod):

    def _A_ref(u, A_re, A_im, B_re, B_im, C_re, C_im, log_dt, Dskip):
        Bsz, L, D = u.shape
        dt = torch.exp(log_dt)[:, None]
        A = A_re + 1j * A_im
        Bc = B_re + 1j * B_im
        Cc = C_re + 1j * C_im
        logdA = dt * A
        dB = dt * Bc
        l = (lambda x, dt: x.to(dt))(torch.arange(L), A_re.dtype)
        P = torch.exp(logdA[:, :, None] * l[None, None, :])
        K = torch.einsum('dn,dnl,dn->dl', Cc, P, dB).real
        L2 = 2 * L
        Kp = _pad(K, ((0, 0), (0, L)))
        up = (lambda x, *d: x.permute(*d))(u, 0, 2, 1)
        up = _pad(up, ((0, 0), (0, 0), (0, L)))
        Kf = (lambda x, axes=(-2, -1): torch.fft.rfft2(x.float(), dim=axes))(Kp[:, None, :], axes=(-2, -1))
        Uf = (lambda x, axes=(-2, -1): torch.fft.rfft2(x.float(), dim=axes))(up[:, :, None, :], axes=(-2, -1))
        Yf = Uf * Kf[None, :, :, :]
        y = (lambda x, s, axes=(-2, -1): torch.fft.irfft2(x, s=s, dim=axes).to(torch.bfloat16))(Yf, (1, L2), axes=(-2, -1))[:, :, 0, :L]
        y = (lambda x, *d: x.permute(*d))(y, 0, 2, 1) + u * Dskip[None, None, :]
        return y

    def _B_ref(x, w_gate, w_up, w_down):
        return _gelu(x @ w_gate) * (x @ w_up) @ w_down
    x = A_u
    mod = (_silu(c) @ w_mod).reshape(c.shape[0], 6, 1, -1)
    sa, ca, ga, sb, cb, gb = (mod[:, 0].clone(), mod[:, 1].clone(), mod[:, 2].clone(), mod[:, 3].clone(), mod[:, 4].clone(), mod[:, 5].clone())
    h = _layernorm(x, axis=-1) * (1 + ca) + sa
    x = x + ga * _A_ref(h, A_A_re, A_A_im, A_B_re, A_B_im, A_C_re, A_C_im, A_log_dt, A_Dskip)
    h = _layernorm(x, axis=-1) * (1 + cb) + sb
    x = x + gb * _B_ref(h, B_w_gate, B_w_up, B_w_down)
    return x
```

```python
import re

class Asm:
    def __init__(self):
        self.lines = []
    def __call__(self, s=''):
        for l in s.split('\n'):
            l = l.strip()
            if l: self.lines.append(l)
    def label(self, name): self.lines.append(name + ':')
    def comment(self, s): self.lines.append('; ' + s)
    def text(self):
        out = []
        for l in self.lines:
            if l.endswith(':') or l.startswith('.') : out.append(l)
            else: out.append('  ' + l)
        return '\n'.join(out) + '\n'

def vr(a, n=1): return f'v{a}' if n == 1 else f'v[{a}:{a+n-1}]'
def ar(a, n=1): return f'a{a}' if n == 1 else f'a[{a}:{a+n-1}]'
def sr(a, n=1): return f's{a}' if n == 1 else f's[{a}:{a+n-1}]'

TRANS = ('v_exp_f32','v_log_f32','v_rcp_f32','v_rsq_f32','v_sqrt_f32','v_sin_f32','v_cos_f32','v_rcp_iflag_f32')
REG_RE = re.compile(r'^(-|abs\()?([vas])(\d+|\[(\d+):(\d+)\])\)?$')

def regs_of(tok):
    tok = tok.strip()
    if tok in ('vcc',): return {('s','vcc')}
    if tok in ('exec',): return {('s','exec')}
    if tok == 'm0': return {('s','m0')}
    m = REG_RE.match(tok)
    if not m: return set()
    k = m.group(2)
    if m.group(4) is not None:
        return {(k, i) for i in range(int(m.group(4)), int(m.group(5)) + 1)}
    return {(k, int(m.group(3)))}

class Ins:
    __slots__ = ('op','ops','defs','uses','cls','text','mods','passes','srcC')
    def __init__(self, text):
        self.text = text
        t = text.split(';')[0].strip()
        parts = t.split(None, 1)
        self.op = parts[0]
        rest = parts[1] if len(parts) > 1 else ''
        toks = [x.strip() for x in rest.split(',')] if rest else []
        mods = ''
        if toks:
            last = toks[-1].split(None, 1)
            toks[-1] = last[0]
            if len(last) > 1: mods = last[1]
        clean = []
        for x in toks:
            clean.append(x)
        self.ops = clean; self.mods = mods
        op = self.op
        if 'op_sel' in t or 'neg_lo' in t or 'neg_hi' in t:
            body = re.split(r'\s(?:op_sel|neg_lo|neg_hi)', rest)[0]
            self.ops = [x.strip() for x in body.split(',')]
            self.mods = rest[len(body):]
        R = [regs_of(x) for x in self.ops]
        U = lambda xs: set().union(*xs) if xs else set()
        self.passes = 0; self.srcC = set()
        if op.startswith('v_mfma'):
            self.cls = 'mfma'; self.defs = R[0]; self.uses = U(R[1:]); self.srcC = R[3]
            self.passes = 8 if '32x32' in op else 4
        elif op.startswith('v_cmp'):
            self.cls = 'valu'; self.defs = R[0]; self.uses = U(R[1:])
        elif op.startswith('v_permlane') and 'swap' in op:
            self.cls = 'valu'; self.defs = U(R[:2]); self.uses = U(R[:2])
        elif op.startswith(('v_fmac','v_dot2c','v_pk_fmac')):
            self.cls = 'valu'; self.defs = R[0]; self.uses = U(R)
        elif op.startswith(('v_add_co','v_sub_co','v_addc_co','v_subb_co','v_subrev_co')):
            self.cls = 'valu'; self.defs = U(R[:2]); self.uses = U(R[2:])
        elif op.startswith('v_'):
            self.cls = 'valu'; self.defs = R[0]; self.uses = U(R[1:])
            if 'dpp' in op and ('bound_ctrl' not in self.mods): self.uses |= R[0]
            if op.startswith('v_writelane'): self.uses |= R[0]
        elif op.startswith('ds_'):
            self.cls = 'ds'
            if op.startswith(('ds_read','ds_bpermute','ds_permute','ds_swizzle')):
                self.defs = R[0]; self.uses = U(R[1:])
                if 'd16' in op: self.uses |= R[0]
            else:
                self.defs = set(); self.uses = U(R)
        elif op.startswith(('buffer_load','global_load')):
            self.cls = 'vmem'
            if ' lds' in (' ' + self.mods) or 'load_lds' in op:
                self.defs = set(); self.uses = U(R) | {('s','m0')}
                self.cls = 'vmem_lds'
            else:
                self.defs = R[0]; self.uses = U(R[1:])
                if 'd16' in op: self.uses |= R[0]
        elif op.startswith(('buffer_store','global_store','buffer_atomic','global_atomic')):
            self.cls = 'vmem_st'; self.defs = set(); self.uses = U(R)
            if 'atomic' in op and 'sc0' in self.mods: self.defs = R[0]
        elif op.startswith(('buffer_wbl2','buffer_inv')):
            self.cls = 'vmem_st'; self.defs = set(); self.uses = set()
        elif op.startswith(('s_load','s_buffer_load','s_memtime','s_memrealtime')):
            self.cls = 'smem'; self.defs = R[0]; self.uses = U(R[1:])
        elif op.startswith('s_'):
            self.cls = 'salu'
            if op.startswith(('s_cmp','s_waitcnt','s_nop','s_barrier','s_cbranch','s_branch','s_endpgm','s_setprio','s_sleep','s_bitcmp')):
                self.defs = set(); self.uses = U(R)
            else:
                self.defs = R[0] if R else set(); self.uses = U(R[1:])
                if 'saveexec' in op: self.defs |= {('s','exec')}; self.uses |= {('s','exec')}
        else:
            raise ValueError('unknown op ' + text)
        if self.cls == 'valu' and op.startswith('v_cndmask') and len(self.ops) == 3:
            self.uses |= {('s','vcc')}

def check(lines, name=''):
    probs = []
    hist = []
    pos = 0
    vm = []
    lg = []
    def vec(s): return {r for r in s if r[0] in 'va' and r[0] != 's'}
    for ln, l in enumerate(lines):
        if l.startswith(';') or l.startswith('.') : continue
        if l.endswith(':'):
            continue
        ins = Ins(l)
        op = ins.op
        if op == 's_waitcnt':
            m = re.search(r'vmcnt\((\d+)\)', l)
            if m:
                n = int(m.group(1))
                if n < len(vm): vm = vm[len(vm)-n:] if n else []
            m = re.search(r'lgkmcnt\((\d+)\)', l)
            if m:
                n = int(m.group(1))
                if n == 0: lg = []
                elif not any(x[2] for x in lg):
                    if n < len(lg): lg = lg[len(lg)-n:]
        touched = ins.defs | ins.uses
        for d, t in vm:
            if d & touched and not (ins.cls == 'vmem' and False):
                probs.append(f'{name}:{ln}: vmcnt hazard: "{l}" touches pending load "{t}"')
        for d, t, _ in lg:
            if d & touched:
                probs.append(f'{name}:{ln}: lgkmcnt hazard: "{l}" touches pending "{t}"')
        if ins.cls in ('vmem','vmem_lds','vmem_st'):
            vm.append((set(ins.defs), l))
            if len(vm) > 63: probs.append(f'{name}:{ln}: more than 63 vmem outstanding')
        if ins.cls == 'ds': lg.append((set(ins.defs), l, False))
        if ins.cls == 'smem': lg.append((set(ins.defs), l, True))
        for p, ppos in reversed(hist):
            dist = pos - ppos - 1
            if dist > 20: break
            need = 0; why = ''
            if p.cls == 'valu':
                pv = vec(p.defs); ps = {r for r in p.defs if r[0] == 's'}
                if ins.cls == 'mfma' and pv & ins.uses: need, why = 2, 'valu->mfma'
                if ins.cls == 'valu' and p.op.replace('_e32','').replace('_e64','') in TRANS and pv & ins.uses and ins.op.replace('_e32','') not in TRANS:
                    need, why = max(need, 1), 'trans->valu'
                if ins.cls == 'valu' and 'dpp' in ins.op and pv & ins.uses: need, why = max(need, 2), 'valu->dpp'
                if ins.op.startswith('v_permlane') and pv & ins.uses: need, why = max(need, 2), 'valu->permlane'
                if ins.op.startswith(('v_readlane','v_readfirstlane')) and pv & ins.uses: need, why = max(need, 1), 'valu->readlane'
                if ps:
                    if ins.cls == 'valu' and ps & ins.uses: need, why = max(need, 2), 'valu sgpr->valu'
                    if ins.cls in ('vmem','vmem_lds','vmem_st') and ps & ins.uses: need, why = max(need, 5), 'valu sgpr->vmem'
            if p.cls == 'mfma':
                big = 12 if p.passes == 8 else 8
                if ins.cls == 'mfma':
                    ab = regs_of(ins.ops[1]) | regs_of(ins.ops[2])
                    if p.defs & ab: need, why = big, 'mfma D->A/B'
                    if p.defs & ins.srcC and not (p.defs == ins.srcC and p.op == ins.op):
                        need, why = max(need, 10 if p.passes == 8 else 6), 'mfma D->C overlap'
                    if p.defs & ins.defs and not (p.defs == ins.defs and p.op == ins.op):
                        need, why = max(need, big), 'mfma D->D overlap'
                elif ins.cls in ('valu','ds','vmem','vmem_st','vmem_lds'):
                    if p.defs & (ins.uses | ins.defs): need, why = big, 'mfma D->valu/mem'
                    if ins.cls == 'valu' and p.srcC & ins.defs: need, why = max(need, 7 if p.passes == 8 else 3), 'mfma srcC WAR'
            if p.cls == 'salu' and ('s','m0') in p.defs and ins.cls == 'vmem_lds': need, why = max(need, 1), 'm0->lds dma'
            if p.cls == 'vmem_st' and ('x4' in p.op or 'x3' in p.op) and ins.cls == 'valu':
                data = regs_of(p.ops[0]) if p.op.startswith('buffer') else regs_of(p.ops[1])
                if data & ins.defs: need, why = max(need, 2), 'store data WAR'
            if need > dist:
                probs.append(f'{name}:{ln}: {why}: need {need} have {dist}: "{p.text}" -> "{l}"')
        hist.append((ins, pos))
        if op == 's_nop': pos += int(ins.ops[0]) + 1
        else: pos += 1
        if len(hist) > 40: hist = hist[-40:]
        if op in ('s_endpgm','s_branch'):
            hist = []; vm = []; lg = []
    return probs
```

```python
from asmlib import *
import layout as LY
OFF = LY.off; SZ = LY.size

KA_A_U, KA_ARE, KA_AIM, KA_BRE, KA_BIM, KA_CRE, KA_CIM, KA_LDT, KA_DSK = 0, 8, 16, 24, 32, 40, 48, 56, 64
KA_WG, KA_WU, KA_WD, KA_C, KA_WMOD, KA_OUT, KA_DBG, KA_WS = 80, 88, 96, 104, 112, 120, 128, 136

def srd(a, d, p, off, size):
    if off == 0:
        a(f's_mov_b32 s{d}, s{p}')
        a(f's_mov_b32 s{d+1}, s{p+1}')
    else:
        a(f's_add_u32 s{d}, s{p}, {off}')
        a(f's_addc_u32 s{d+1}, s{p+1}, 0')
    a(f's_mov_b32 s{d+2}, {size}')
    a(f's_mov_b32 s{d+3}, 0x20000')

def kernel_head(a, name):
    a(f'.globl {name}')
    a('.p2align 8')
    a(f'.type {name},@function')
    a.label(name)

def kernel_desc(name, vgprs, accum, sgprs=102):
    return f'''.amdhsa_kernel {name}
  .amdhsa_next_free_vgpr {vgprs}
  .amdhsa_next_free_sgpr {sgprs}
  .amdhsa_accum_offset {accum}
  .amdhsa_group_segment_fixed_size 0
  .amdhsa_kernarg_size 144
  .amdhsa_user_sgpr_count 2
  .amdhsa_user_sgpr_kernarg_segment_ptr 1
  .amdhsa_system_sgpr_workgroup_id_x 1
  .amdhsa_float_denorm_mode_32 3
.end_amdhsa_kernel
'''

class VM:
    def __init__(self, a): self.a = a; self.q = []
    def issue(self, tag): self.q.append(tag); assert len(self.q) <= 63, 'vmcnt overflow'
    def wait(self, tag):
        idx = [i for i, t in enumerate(self.q) if t == tag]
        if not idx: return
        n = len(self.q) - 1 - idx[-1]
        self.a(f's_waitcnt vmcnt({n})')
        self.q = self.q[idx[-1] + 1:]
    def wait_all(self):
        self.a('s_waitcnt vmcnt(0)'); self.q = []

def bf16_round_f32(a, dst, src):
    a(f'v_cvt_pk_bf16_f32 v{dst}, v{src}, v{src}')
    a(f'v_lshlrev_b32 v{dst}, 16, v{dst}')

def unpack2(a, lo, hi, src):
    a(f'v_lshlrev_b32 v{lo}, 16, v{src}')
    a(f'v_and_b32 v{hi}, 0xffff0000, v{src}')

def xreduce_8_16_32(a, regs, tmp):
    a('s_nop 1')
    for r in regs: a(f'v_add_f32_dpp v{r}, v{r}, v{r} row_ror:8 row_mask:0xf bank_mask:0xf')
    for r, t in zip(regs, tmp): a(f'v_mov_b32 v{t}, v{r}')
    a('s_nop 1')
    for r, t in zip(regs, tmp): a(f'v_permlane16_swap_b32 v{r}, v{t}')
    a('s_nop 1')
    for r, t in zip(regs, tmp): a(f'v_add_f32 v{r}, v{r}, v{t}')
    for r, t in zip(regs, tmp): a(f'v_mov_b32 v{t}, v{r}')
    a('s_nop 1')
    for r, t in zip(regs, tmp): a(f'v_permlane32_swap_b32 v{r}, v{t}')
    a('s_nop 1')
    for r, t in zip(regs, tmp): a(f'v_add_f32 v{r}, v{r}, v{t}')

def ln_finish(a, s1, s2, m, rsd, t0, t1):
    a(f'v_mul_f32 v{s1}, 0x{fbits(1.0/576):08x}, v{s1}')
    a(f'v_mul_f32 v{s2}, 0x{fbits(1.0/576):08x}, v{s2}')
    a(f'v_fma_f32 v{s2}, -v{s1}, v{s1}, v{s2}')
    a(f'v_max_f32 v{s2}, 0, v{s2}')
    bf16_round_f32(a, t0, s2)
    a(f'v_add_f32 v{t0}, 0x{fbits(1e-5):08x}, v{t0}')
    bf16_round_f32(a, t0, t0)
    a(f'v_sqrt_f32 v{t0}, v{t0}')
    bf16_round_f32(a, t1, s1)
    bf16_round_f32(a, t0, t0)
    a(f'v_rcp_f32 v{rsd}, v{t0}')
    a('s_nop 0')
    a(f'v_mul_f32 v{m}, v{t1}, v{rsd}')
    a(f'v_sub_f32 v{m}, 0, v{m}')

import struct
def fbits(x): return struct.unpack('<I', struct.pack('<f', x))[0]
def flit(x): return f'0x{fbits(x):08x}'
```

```python
from gen_common import *
import math

K1_KGEN, K1_LN, K1_MOD, K1_WD = 288, 64, 54, 81
K1_GRID = K1_KGEN + K1_LN + K1_MOD + K1_WD
K1_LDS = 36864 + 2 * 4112
LOG2E = math.log2(math.e)

def role_ln1(a):
    a.comment('---- LN1: normalize rows, write NT[dg4][t][4]')
    a(f's_load_dwordx2 s[4:5], s[0:1], {KA_A_U}')
    a(f's_load_dwordx2 s[6:7], s[0:1], {KA_WS}')
    a('v_and_b32 v1, 63, v0')
    a('v_lshrrev_b32 v2, 6, v0')
    a('v_and_b32 v3, 7, v1')
    a('v_lshrrev_b32 v4, 3, v1')
    a('s_lshl_b32 s3, s2, 5')
    a('v_lshl_add_u32 v5, v2, 3, v3')
    a('v_add_u32 v5, s3, v5')
    a('v_mul_u32_u24 v6, 1152, v5')
    a('v_lshl_add_u32 v6, v4, 4, v6')
    a('v_lshlrev_b32 v7, 15, v4')
    a('v_lshl_add_u32 v7, v5, 3, v7')
    a('s_waitcnt lgkmcnt(0)')
    srd(a, 8, 4, 0, 2048 * 1152)
    srd(a, 12, 6, OFF['NT'], SZ['NT'])
    X = 8
    U = 44
    for it in range(9):
        a(f'buffer_load_dwordx4 v[{X+4*it}:{X+4*it+3}], v6, s[8:11], 0 offen offset:{it*128}')
    A1, A2 = 116, 118
    a(f'v_mov_b32 v{A1}, 0'); a(f'v_mov_b32 v{A1+1}, 0'); a(f'v_mov_b32 v{A2}, 0'); a(f'v_mov_b32 v{A2+1}, 0')
    for it in range(9):
        a(f's_waitcnt vmcnt({8-it})')
        for k in range(4):
            u = U + 8*it + 2*k
            unpack2(a, u, u+1, X+4*it+k)
        for k in range(4):
            u = U + 8*it + 2*k
            a(f'v_pk_add_f32 v[{A1}:{A1+1}], v[{A1}:{A1+1}], v[{u}:{u+1}]')
            a(f'v_pk_fma_f32 v[{A2}:{A2+1}], v[{u}:{u+1}], v[{u}:{u+1}], v[{A2}:{A2+1}]')
    a(f'v_add_f32 v{A1}, v{A1}, v{A1+1}')
    a(f'v_add_f32 v{A2}, v{A2}, v{A2+1}')
    xreduce_8_16_32(a, [A1, A2], [120, 121])
    RS, M = 122, 124
    ln_finish(a, A1, A2, M, RS, 120, 121)
    for it in range(9):
        for k in range(4):
            u = U + 8*it + 2*k
            a(f'v_pk_fma_f32 v[{u}:{u+1}], v[{u}:{u+1}], v[{RS}:{RS+1}], v[{M}:{M+1}] op_sel_hi:[1,0,0]')
        for k in range(4):
            u = U + 8*it + 2*k
            a(f'v_cvt_pk_bf16_f32 v{X+4*it+k}, v{u}, v{u+1}')
        a(f's_mov_b32 s16, {it*262144}')
        a(f's_mov_b32 s17, {it*262144+16384}')
        a(f'buffer_store_dwordx2 v[{X+4*it}:{X+4*it+1}], v7, s[12:15], s16 offen')
        a(f'buffer_store_dwordx2 v[{X+4*it+2}:{X+4*it+3}], v7, s[12:15], s17 offen')
    a('s_endpgm')

def role_mod(a):
    a.comment('---- mod = bf16(silu(c) @ w_mod)')
    a(f's_load_dwordx2 s[4:5], s[0:1], {KA_WMOD}')
    a(f's_load_dwordx2 s[6:7], s[0:1], {KA_WS}')
    a(f's_load_dwordx2 s[20:21], s[0:1], {KA_C}')
    a('v_and_b32 v1, 63, v0')
    a('v_lshrrev_b32 v2, 6, v0')
    a('v_and_b32 v3, 7, v1')
    a('v_lshrrev_b32 v4, 3, v1')
    a('v_mul_u32_u24 v5, 144, v2')
    a('v_add_u32 v5, v5, v4')
    a('v_mul_u32_u24 v6, 6912, v5')
    a('v_lshl_add_u32 v6, v3, 4, v6')
    a('s_lshl_b32 s3, s2, 7')
    a('v_add_u32 v6, s3, v6')
    a('v_lshlrev_b32 v7, 1, v5')
    a('s_waitcnt lgkmcnt(0)')
    srd(a, 8, 4, 0, 576 * 6912)
    srd(a, 12, 6, OFF['MOD'], SZ['MOD'])
    srd(a, 16, 20, 0, 1152)
    C = 8
    W = 28
    for it in range(18):
        a(f'buffer_load_ushort v{C+it}, v7, s[16:19], 0 offen offset:{16*it}')
    for it in range(18):
        a(f's_mov_b32 s22, {it*55296}')
        a(f'buffer_load_dwordx4 v[{W+4*it}:{W+4*it+3}], v6, s[8:11], s22 offen')
    T = 100
    a('s_waitcnt vmcnt(18)')
    for it in range(18): a(f'v_lshlrev_b32 v{C+it}, 16, v{C+it}')
    for it in range(18): a(f'v_mul_f32 v{T+it}, {flit(-LOG2E)}, v{C+it}')
    for it in range(18): a(f'v_exp_f32 v{T+it}, v{T+it}')
    for it in range(18): a(f'v_add_f32 v{T+it}, 1.0, v{T+it}')
    for it in range(18): a(f'v_rcp_f32 v{T+it}, v{T+it}')
    for it in range(18): a(f'v_mul_f32 v{C+it}, v{C+it}, v{T+it}')
    for it in range(18): a(f'v_cvt_pk_bf16_f32 v{C+it}, v{C+it}, v{C+it}')
    for it in range(18): a(f'v_lshlrev_b32 v{T+it}, 16, v{C+it}')
    ACC = 120
    U = 128
    for i in range(8): a(f'v_mov_b32 v{ACC+i}, 0')
    for it in range(18):
        a(f's_waitcnt vmcnt({17-it})')
        for k in range(4): unpack2(a, U+2*k, U+2*k+1, W+4*it+k)
        s = T + it; pair = s & ~1; hi = s & 1
        for k in range(4):
            a(f'v_pk_fma_f32 v[{ACC+2*k}:{ACC+2*k+1}], v[{U+2*k}:{U+2*k+1}], v[{pair}:{pair+1}], v[{ACC+2*k}:{ACC+2*k+1}] op_sel:[0,{hi},0] op_sel_hi:[1,{hi},1]')
    xreduce_8_16_32(a, [ACC+i for i in range(8)], [U+i for i in range(8)])
    a('v_lshlrev_b32 v8, 8, v2')
    a('v_lshl_add_u32 v8, v3, 5, v8')
    a('s_mov_b64 exec, 0xff')
    a(f'ds_write_b128 v8, v[{ACC}:{ACC+3}]')
    a(f'ds_write_b128 v8, v[{ACC+4}:{ACC+7}] offset:16')
    a('s_mov_b64 exec, -1')
    a('s_waitcnt lgkmcnt(0)')
    a('s_barrier')
    a('v_lshlrev_b32 v8, 2, v1')
    a('ds_read_b32 v10, v8')
    a('ds_read_b32 v11, v8 offset:256')
    a('ds_read_b32 v12, v8 offset:512')
    a('ds_read_b32 v13, v8 offset:768')
    a('v_lshlrev_b32 v9, 1, v1')
    a('v_add_u32 v9, s3, v9')
    a('s_waitcnt lgkmcnt(0)')
    a('v_add_f32 v10, v10, v11')
    a('v_add_f32 v12, v12, v13')
    a('v_add_f32 v10, v10, v12')
    a('v_cvt_pk_bf16_f32 v10, v10, v10')
    a('v_cmp_gt_u32 vcc, 64, v0')
    a('s_and_saveexec_b64 s[24:25], vcc')
    a('s_cbranch_execz MOD_DONE')
    a('buffer_store_short v10, v9, s[12:15], 0 offen')
    a.label('MOD_DONE')
    a('s_endpgm')

def transpose8x8(a, R, O, selE, selO):
    for j in range(8):
        for dw in range(4):
            s = selO if (j & 1) else selE
            a(f'v_perm_b32 v{O+4*j+dw}, v{R+4*(2*dw+1)+(j>>1)}, v{R+4*(2*dw)+(j>>1)}, s{s}')

def role_wd(a):
    a.comment('---- pre-tile w_down -> WDT')
    a(f's_load_dwordx2 s[4:5], s[0:1], {KA_WD}')
    a(f's_load_dwordx2 s[6:7], s[0:1], {KA_WS}')
    a('v_and_b32 v1, 63, v0')
    a('v_lshrrev_b32 v2, 6, v0')
    a('s_nop 0')
    a('v_readfirstlane_b32 s3, v2')
    a('s_lshl_b32 s16, s2, 2')
    a('s_add_u32 s16, s16, s3')
    a('s_mul_i32 s17, s16, 7282')
    a('s_lshr_b32 s17, s17, 16')
    a('s_mul_i32 s18, s17, 9')
    a('s_sub_u32 s18, s16, s18')
    a('v_and_b32 v3, 7, v1')
    a('v_bfe_u32 v4, v1, 3, 2')
    a('v_lshrrev_b32 v5, 5, v1')
    a('s_lshl_b32 s19, s18, 3')
    a('v_add_u32 v6, s19, v3')
    a('v_mul_u32_u24 v7, 3641, v6')
    a('v_lshrrev_b32 v7, 16, v7')
    a('v_mul_u32_u24 v8, 18, v7')
    a('v_sub_u32 v8, v6, v8')
    a('v_lshrrev_b32 v9, 2, v8')
    a('v_lshlrev_b32 v9, 11, v9')
    a('v_and_b32 v10, 3, v8')
    a('v_lshl_add_u32 v9, v10, 6, v9')
    a('v_lshlrev_b32 v10, 7, v8')
    a('v_add_u32 v10, 6144, v10')
    a('v_cmp_gt_u32 vcc, 16, v8')
    a('v_mov_b32 v11, 64')
    a('v_mov_b32 v12, 1024')
    a('v_cndmask_b32 v9, v10, v9, vcc')
    a('v_cndmask_b32 v11, v11, v12, vcc')
    a('v_lshl_add_u32 v9, v4, 8, v9')
    a(f'v_mul_u32_u24 v7, {144*9}, v7')
    a('v_lshlrev_b32 v7, 10, v7')
    a('v_add_u32 v9, v9, v7')
    a('s_waitcnt lgkmcnt(0)')
    srd(a, 8, 4, 0, 4608 * 1152)
    srd(a, 12, 6, OFF['WDT'], SZ['WDT'])
    a('s_mov_b32 s20, 0x05040100')
    a('s_mov_b32 s21, 0x07060302')
    R0, R1, O = 24, 56, 88
    for uu in range(2):
        R = R0 if uu == 0 else R1
        a('s_lshl_b32 s22, s17, 2')
        a(f's_add_u32 s22, s22, {2*uu}')
        a('v_add_u32 v13, s22, v5')
        a('v_lshrrev_b32 v14, 1, v4')
        a('v_lshl_add_u32 v14, v13, 1, v14')
        a('v_lshrrev_b32 v15, 3, v14')
        a('v_lshlrev_b32 v15, 7, v15')
        a('v_and_b32 v14, 7, v14')
        a('v_add_u32 v15, v15, v14')
        a('v_and_b32 v14, 1, v4')
        a('v_lshl_add_u32 v15, v14, 5, v15')
        a('v_mul_u32_u24 v15, 1152, v15')
        a(f'v_lshl_add_u32 v{16+uu}, v6, 4, v15')
        a(f'v_mul_u32_u24 v13, {9*1024}, v13')
        a(f'v_add_u32 v{18+2*uu}, v9, v13')
        a(f'v_add_u32 v{19+2*uu}, v{18+2*uu}, v11')
        for e in range(8):
            a(f's_mov_b32 s23, {(64*(e>>2) + 8*(e&3))*1152}')
            a(f'buffer_load_dwordx4 v[{R+4*e}:{R+4*e+3}], v{16+uu}, s[8:11], s23 offen')
    for uu in range(2):
        R = R0 if uu == 0 else R1
        a(f's_waitcnt vmcnt({8 if uu == 0 else 8})')
        transpose8x8(a, R, O, 20, 21)
        for j in range(8):
            base = 18+2*uu if j < 4 else 19+2*uu
            a(f'buffer_store_dwordx4 v[{O+4*j}:{O+4*j+3}], v{base}, s[12:15], 0 offen offset:{(j&3)*16}')
        if uu == 0: a('s_nop 1')
    a('s_endpgm')

def cmul(a, D, A, B, T):
    a(f'v_pk_mul_f32 v[{T}:{T+1}], v[{A}:{A+1}], v[{B}:{B+1}] op_sel:[0,0] op_sel_hi:[1,0]')
    a(f'v_pk_fma_f32 v[{D}:{D+1}], v[{A}:{A+1}], v[{B}:{B+1}], v[{T}:{T+1}] op_sel:[1,1,0] op_sel_hi:[0,1,1] neg_lo:[0,1,0]')

def role_kgen(a):
    a.comment('---- SSM kernel generation')
    a(f's_load_dwordx4 s[4:7], s[0:1], {KA_ARE}')
    a(f's_load_dwordx4 s[8:11], s[0:1], {KA_BRE}')
    a(f's_load_dwordx4 s[12:15], s[0:1], {KA_CRE}')
    a(f's_load_dwordx2 s[16:17], s[0:1], {KA_LDT}')
    a(f's_load_dwordx2 s[18:19], s[0:1], {KA_WS}')
    a('v_and_b32 v1, 63, v0')
    a('v_lshrrev_b32 v2, 6, v0')
    a('s_nop 0')
    a('v_readfirstlane_b32 s3, v2')
    a('s_lshr_b32 s20, s3, 1')
    a('s_and_b32 s21, s3, 1')
    a('s_lshl_b32 s22, s2, 1')
    a('s_add_u32 s22, s22, s20')
    a('s_lshl_b32 s23, s22, 8')
    a('s_lshl_b32 s24, s21, 7')
    a('s_add_u32 s23, s23, s24')
    a('v_lshl_add_u32 v3, v1, 1, s23')
    a('s_lshl_b32 s24, s22, 1')
    a('v_mov_b32 v4, s24')
    a('s_waitcnt lgkmcnt(0)')
    a('global_load_ushort v8, v4, s[16:17]')
    a('global_load_ushort v9, v3, s[4:5]')
    a('global_load_ushort v10, v3, s[6:7]')
    a('global_load_ushort v11, v3, s[8:9]')
    a('global_load_ushort v12, v3, s[10:11]')
    a('global_load_ushort v13, v3, s[12:13]')
    a('global_load_ushort v14, v3, s[14:15]')
    srd(a, 28, 18, OFF['KA'], SZ['KA'])
    a('s_mul_i32 s25, s3, 9216')
    a('v_lshl_add_u32 v5, v1, 2, s25')
    a('v_and_b32 v6, 15, v1')
    a('v_lshrrev_b32 v7, 4, v1')
    a('v_mul_u32_u24 v16, 288, v6')
    a('v_lshl_add_u32 v16, v7, 4, v16')
    a('v_add_u32 v16, s25, v16')
    a('s_mul_i32 s26, s20, 4112')
    a('s_add_u32 s26, s26, 36864')
    a('s_waitcnt vmcnt(0)')
    for r in range(8, 15): a(f'v_lshlrev_b32 v{r}, 16, v{r}')
    a(f'v_mul_f32 v8, {flit(LOG2E)}, v8')
    a('v_exp_f32 v8, v8')
    a('s_nop 0')
    bf16_round_f32(a, 8, 8)
    a('v_mul_f32 v9, v8, v9')
    a('v_mul_f32 v10, v8, v10')
    a('v_mul_f32 v11, v8, v11')
    a('v_mul_f32 v12, v8, v12')
    X0 = 40
    a(f'v_mul_f32 v{X0}, v13, v11')
    a(f'v_mul_f32 v{X0+1}, v13, v12')
    a(f'v_fma_f32 v{X0}, -v14, v12, v{X0}')
    a(f'v_fma_f32 v{X0+1}, v14, v11, v{X0+1}')
    a(f'v_mul_f32 v9, {flit(LOG2E)}, v9')
    a(f'v_mul_f32 v10, {flit(1/(2*math.pi))}, v10')
    Ls = [1, 16, 256, 512, 1024]; E = {1:18, 16:20, 256:22, 512:24, 1024:26}
    T = 72
    for i, Lv in enumerate(Ls):
        a(f'v_mul_f32 v{T+3*i}, {flit(float(Lv))}, v9')
        a(f'v_mul_f32 v{T+3*i+1}, {flit(float(Lv))}, v10')
    for i in range(5): a(f'v_fract_f32 v{T+3*i+1}, v{T+3*i+1}')
    for i in range(5): a(f'v_exp_f32 v{T+3*i}, v{T+3*i}')
    for i in range(5): a(f'v_cos_f32 v{T+3*i+2}, v{T+3*i+1}')
    for i in range(5): a(f'v_sin_f32 v{T+3*i+1}, v{T+3*i+1}')
    a('s_nop 0')
    for i, Lv in enumerate(Ls):
        a(f'v_mul_f32 v{E[Lv]}, v{T+3*i}, v{T+3*i+2}')
        a(f'v_mul_f32 v{E[Lv]+1}, v{T+3*i}, v{T+3*i+1}')
    TT = 38
    cmul(a, 28, 24, 22, TT)
    cmul(a, 30, 26, 22, TT)
    cmul(a, 32, 26, 24, TT)
    cmul(a, 36, 26, 26, TT)
    cmul(a, 34, 26, 28, TT)
    Y = [72, 74]; T2 = 76; PK = 78
    a(f'v_mov_b32 v{PK}, 0x00003f80')
    a(f'ds_write_b32 v5, v{PK} offset:0')
    a(f'v_cvt_pk_bf16_f32 v{PK+1}, v20, -v21')
    a(f'ds_write_b32 v5, v{PK+1} offset:288')
    a(f'v_cvt_pk_bf16_f32 v{PK+2}, v{X0}, v{X0+1}')
    a(f'ds_write_b32 v5, v{PK+2} offset:{16*288}')
    prevY = 20
    for i in range(1, 16):
        cmul(a, X0+2*i, X0+2*(i-1), 18, TT)
        if i >= 2:
            d = Y[i & 1]
            cmul(a, d, prevY, 20, T2)
            prevY = d
        p = PK + (i & 1) * 2
        a(f'v_cvt_pk_bf16_f32 v{p}, v{X0+2*i}, v{X0+2*i+1}')
        a(f'ds_write_b32 v5, v{p} offset:{(16+i)*288}')
        if i >= 2:
            a(f'v_cvt_pk_bf16_f32 v{p+1}, v{prevY}, -v{prevY+1}')
            a(f'ds_write_b32 v5, v{p+1} offset:{i*288}')
    BF = 80
    AF = 96
    DD = 112
    a('s_waitcnt lgkmcnt(0)')
    for ks in range(4): a(f'ds_read_b128 v[{BF+4*ks}:{BF+4*ks+3}], v16 offset:{64*ks}')
    def tile_mfma(t):
        for ks in range(4): a(f'ds_read_b128 v[{AF+4*ks}:{AF+4*ks+3}], v16 offset:{16*288+64*ks}')
        for ks in range(4):
            a(f's_waitcnt lgkmcnt({3-ks})')
            c = '0' if ks == 0 else f'v[{DD+4*t}:{DD+4*t+3}]'
            a(f'v_mfma_f32_16x16x32_bf16 v[{DD+4*t}:{DD+4*t+3}], v[{AF+4*ks}:{AF+4*ks+3}], v[{BF+4*ks}:{BF+4*ks+3}], {c}')
    tile_mfma(0)
    def rows(lst):
        for row, (xi, e) in enumerate(lst):
            d = Y[row & 1]; t = TT if row & 1 else T2
            cmul(a, d, X0+2*xi, e, t)
            p = PK + (row & 1)
            a(f'v_cvt_pk_bf16_f32 v{p}, v{d}, v{d+1}')
            a(f'ds_write_b32 v5, v{p} offset:{(16+row)*288}')
        a('s_waitcnt lgkmcnt(0)')
    rows([(2*i, 22) for i in range(8)] + [(4*i, 24) for i in range(4)] + [(4*i, 28) for i in range(4)])
    tile_mfma(1)
    rows([(8*ip, e) for e in (26, 30, 32, 34) for ip in range(2)] + [(0, 36)])
    tile_mfma(2)
    a('s_nop 7')
    a('v_lshlrev_b32 v17, 4, v1')
    a('s_cmp_eq_u32 s21, 0')
    a('s_cbranch_scc1 KG_LOW')
    a('v_add_u32 v17, s25, v17')
    for t in range(3): a(f'ds_write_b128 v17, v[{DD+4*t}:{DD+4*t+3}] offset:{1024*t}')
    a('s_waitcnt lgkmcnt(0)')
    a('s_barrier')
    a('s_branch KG_JOIN')
    a.label('KG_LOW')
    a('s_add_u32 s27, s25, 9216')
    a('v_add_u32 v17, s27, v17')
    a('s_barrier')
    for t in range(3): a(f'ds_read_b128 v[{AF+4*t}:{AF+4*t+3}], v17 offset:{1024*t}')
    a('v_lshlrev_b32 v18, 5, v6')
    a('v_add_u32 v18, s26, v18')
    a('v_lshl_add_u32 v19, v7, 3, v18')
    a('v_lshlrev_b32 v20, 4, v7')
    a('v_add_u32 v20, 512, v20')
    a('v_lshlrev_b32 v21, 9, v7')
    a('v_cmp_gt_u32 vcc, 2, v7')
    a('v_mov_b32 v22, 8')
    a('v_mov_b32 v23, 4')
    a('v_cndmask_b32 v20, v21, v20, vcc')
    a('v_cndmask_b32 v22, v22, v23, vcc')
    a('v_add_u32 v20, v20, v18')
    a('v_add_u32 v21, v20, v22')
    a('v_add_u32 v24, v21, v22')
    a('v_add_u32 v25, v24, v22')
    a('v_lshlrev_b32 v26, 10, v7')
    a('v_add_u32 v26, 2048, v26')
    a('v_add_u32 v26, v26, v18')
    a('s_waitcnt lgkmcnt(0)')
    for i in range(12): a(f'v_add_f32 v{DD+i}, v{DD+i}, v{AF+i}')
    for i in range(6): a(f'v_cvt_pk_bf16_f32 v{AF+i}, v{DD+2*i}, v{DD+2*i+1}')
    a(f'ds_write_b16 v19, v{AF} offset:0')
    a(f'ds_write_b16_d16_hi v19, v{AF} offset:2')
    a(f'ds_write_b16 v19, v{AF+1} offset:4')
    a(f'ds_write_b16_d16_hi v19, v{AF+1} offset:6')
    a(f'ds_write_b16 v20, v{AF+2}')
    a(f'ds_write_b16_d16_hi v21, v{AF+2}')
    a(f'ds_write_b16 v24, v{AF+3}')
    a(f'ds_write_b16_d16_hi v25, v{AF+3}')
    a('s_mov_b32 exec_lo, -1')
    a('s_mov_b32 exec_hi, 1')
    a(f'ds_write_b16 v26, v{AF+4} offset:0')
    a('s_mov_b32 exec_hi, 0')
    a(f'ds_write_b16_d16_hi v26, v{AF+4} offset:16')
    a(f'ds_write_b16 v26, v{AF+5} offset:512')
    a(f'ds_write_b16_d16_hi v26, v{AF+5} offset:528')
    a('s_mov_b64 exec, -1')
    a.label('KG_JOIN')
    a('s_waitcnt lgkmcnt(0)')
    a('s_barrier')
    a('s_mul_i32 s27, s22, 8448')
    a('s_lshl_b32 s24, s21, 7')
    for q in range(2):
        B0 = 40 + 32*q
        a(f'v_add_u32 v{B0}, s24, v1')
        if q: a(f'v_add_u32 v{B0}, 64, v{B0}')
        a(f'v_lshlrev_b32 v{B0+1}, 4, v{B0}')
        a(f'v_cvt_f32_u32 v{B0+2}, v{B0+1}')
        for i in range(-1, 8):
            if i == 0: a(f'v_mov_b32 v{B0+4}, v{B0+2}')
            else: a(f'v_add_f32 v{B0+4+i}, {flit(2.0*i)}, v{B0+2}')
        a(f'v_cvt_pk_bf16_f32 v{B0+12}, v{B0+3}, v{B0+3}')
        for k in range(4): a(f'v_cvt_pk_bf16_f32 v{B0+13+k}, v{B0+4+2*k}, v{B0+5+2*k}')
        a(f'v_lshlrev_b32 v{B0+3}, 16, v{B0+12}')
        for k in range(4): unpack2(a, B0+4+2*k, B0+5+2*k, B0+13+k)
        for i in range(9): a(f'v_cvt_u32_f32 v{B0+3+i}, v{B0+3+i}')
        for i in range(9): a(f'v_add_u32 v{B0+3+i}, s26, v{B0+3+i}')
        for i in range(9): a(f'ds_read_u16 v{B0+12+i}, v{B0+3+i}')
        a(f'v_add_u32 v{B0+1}, s27, v{B0+1}')
    for q in range(2):
        B0 = 40 + 32*q
        a(f's_waitcnt lgkmcnt({9 if q == 0 else 0})')
        a(f'v_cmp_eq_u32 vcc, 0, v{B0}')
        a('s_nop 1')
        a(f'v_cndmask_b32_e64 v{B0+12}, v{B0+12}, 0, vcc')
        for k in range(4): a(f'v_lshl_or_b32 v{B0+24+k}, v{B0+14+2*k}, 16, v{B0+13+2*k}')
        for k in range(4): a(f'v_lshl_or_b32 v{B0+28+k}, v{B0+13+2*k}, 16, v{B0+12+2*k}')
        a(f'buffer_store_dwordx4 v[{B0+24}:{B0+27}], v{B0+1}, s[28:31], 0 offen offset:128')
        a(f'v_add_u32 v{B0+2}, 4224, v{B0+1}')
        a(f'buffer_store_dwordx4 v[{B0+28}:{B0+31}], v{B0+2}, s[28:31], 0 offen offset:128')
    a('s_cmp_eq_u32 s21, 0')
    a('s_cbranch_scc0 KG_END')
    for i in range(4): a(f'v_mov_b32 v{8+i}, 0')
    a('v_lshlrev_b32 v12, 4, v1')
    a('v_add_u32 v12, s27, v12')
    a('v_add_u32 v13, 4224, v12')
    a('s_mov_b64 exec, 0xff')
    a('buffer_store_dwordx4 v[8:11], v12, s[28:31], 0 offen')
    a('buffer_store_dwordx4 v[8:11], v13, s[28:31], 0 offen')
    a.label('KG_END')
    a('s_endpgm')

def gen_k1(name='prep_kernel'):
    a = Asm()
    kernel_head(a, name)
    a(f's_cmp_lt_u32 s2, {K1_KGEN}')
    a('s_cbranch_scc1 K1_KGEN')
    a(f's_sub_u32 s2, s2, {K1_KGEN}')
    a(f's_cmp_lt_u32 s2, {K1_LN}')
    a('s_cbranch_scc1 K1_LN1')
    a(f's_sub_u32 s2, s2, {K1_LN}')
    a(f's_cmp_lt_u32 s2, {K1_MOD}')
    a('s_cbranch_scc1 K1_MOD')
    a(f's_sub_u32 s2, s2, {K1_MOD}')
    a(f's_cmp_lt_u32 s2, {K1_WD}')
    a('s_cbranch_scc1 K1_WD')
    a('s_endpgm')
    a.label('K1_KGEN'); role_kgen(a)
    a.label('K1_LN1'); role_ln1(a)
    a.label('K1_MOD'); role_mod(a)
    a.label('K1_WD'); role_wd(a)
    return a, (name, K1_GRID, 256, K1_LDS), kernel_desc(name, 168, 168)
```

```python
from gen_common import *
from gen_k1 import transpose8x8

K2_CONV, K2_W1 = 144, 108
K2_GRID = K2_CONV + K2_W1
CH_STRIDE = 24704
COPY = 4288
UOFF = 17152 + 2400
K2_LDS = 4 * CH_STRIDE

def role_w1(a):
    a.comment('---- pre-tile w_gate / w_up -> W1T')
    a(f's_load_dwordx4 s[4:7], s[0:1], {KA_WG}')
    a(f's_load_dwordx2 s[16:17], s[0:1], {KA_WS}')
    a('v_and_b32 v1, 63, v0')
    a('v_lshrrev_b32 v2, 6, v0')
    a('s_nop 0')
    a('v_readfirstlane_b32 s3, v2')
    a('s_lshl_b32 s18, s2, 2')
    a('s_add_u32 s18, s18, s3')
    a('s_cmp_ge_u32 s18, 216')
    a('s_cselect_b32 s19, 1, 0')
    a('s_mul_i32 s20, s19, 216')
    a('s_sub_u32 s18, s18, s20')
    a('s_mul_i32 s20, s18, 10923')
    a('s_lshr_b32 s20, s20, 16')
    a('s_mul_i32 s21, s20, 6')
    a('s_sub_u32 s21, s18, s21')
    a('v_and_b32 v3, 15, v1')
    a('v_bfe_u32 v4, v1, 4, 1')
    a('v_lshrrev_b32 v5, 5, v1')
    a('s_waitcnt lgkmcnt(0)')
    a('s_cmp_eq_u32 s19, 0')
    a('s_cselect_b32 s24, s4, s6')
    a('s_cselect_b32 s25, s5, s7')
    srd(a, 8, 24, 0, 576 * 9216)
    srd(a, 12, 16, OFF['W1T'], SZ['W1T'])
    a('s_mov_b32 s26, 0x05040100')
    a('s_mov_b32 s27, 0x07060302')
    a('s_lshl_b32 s22, s20, 8')
    a('v_lshl_add_u32 v6, v3, 4, s22')
    a('v_lshlrev_b32 v7, 4, v5')
    a('v_lshl_add_u32 v7, v4, 3, v7')
    a('v_mul_u32_u24 v7, 9216, v7')
    a('v_add_u32 v6, v6, v7')
    a('s_lshl_b32 s23, s19, 4')
    a('v_add_u32 v8, s23, v3')
    a('v_lshl_add_u32 v8, v4, 5, v8')
    a('v_lshlrev_b32 v8, 4, v8')
    a('v_lshl_add_u32 v8, v5, 10, v8')
    a(f's_mul_i32 s22, s20, {8*36*1024}')
    a('v_add_u32 v8, s22, v8')
    R = [16, 48, 80]; O = 112
    for uu in range(3):
        a('s_mul_i32 s28, s21, 3')
        a(f's_add_u32 s28, s28, {uu}')
        a(f's_mul_i32 s29, s28, {32*9216}')
        a(f'v_add_u32 v{9+uu}, s29, v6')
        a('s_lshl_b32 s29, s28, 11')
        a(f'v_add_u32 v{12+uu}, s29, v8')
        for e in range(8):
            a(f's_mov_b32 s30, {e*9216}')
            a(f'buffer_load_dwordx4 v[{R[uu]+4*e}:{R[uu]+4*e+3}], v{9+uu}, s[8:11], s30 offen')
    for uu in range(3):
        a('s_waitcnt vmcnt(16)')
        transpose8x8(a, R[uu], O, 26, 27)
        for j in range(8):
            a(f's_mov_b32 s30, {j*36864}')
            a(f'buffer_store_dwordx4 v[{O+4*j}:{O+4*j+3}], v{12+uu}, s[12:15], s30 offen')
        if uu < 2: a('s_nop 1')
    a('s_endpgm')

def role_conv(a):
    a.comment('---- causal conv via Toeplitz MFMA; 4 channels per WG, one per wave')
    a(f's_load_dwordx2 s[4:5], s[0:1], {KA_WS}')
    a(f's_load_dwordx2 s[6:7], s[0:1], {KA_DSK}')
    a('v_and_b32 v1, 63, v0')
    a('v_lshrrev_b32 v2, 6, v0')
    a('s_nop 0')
    a('v_readfirstlane_b32 s3, v2')
    a('s_lshl_b32 s16, s2, 3')
    a('s_waitcnt lgkmcnt(0)')
    a(f's_add_u32 s18, s4, {OFF["MOD"]}')
    a('s_addc_u32 s19, s5, 0')
    a('s_add_u32 s18, s18, s16')
    a('s_addc_u32 s19, s19, 0')
    a('s_add_u32 s6, s6, s16')
    a('s_addc_u32 s7, s7, 0')
    a('s_load_dwordx2 s[20:21], s[18:19], 0')
    a('s_load_dwordx2 s[22:23], s[18:19], 1152')
    a('s_load_dwordx2 s[24:25], s[6:7], 0')
    srd(a, 8, 4, OFF['NT'], SZ['NT'])
    srd(a, 12, 4, OFF['KA'] - 16, SZ['KA'] + 16)
    vm = VM(a)
    a('v_lshlrev_b32 v3, 4, v1')
    a('s_lshl_b32 s26, s2, 2')
    a('s_add_u32 s26, s26, s3')
    a('s_mul_i32 s26, s26, 8448')
    a('s_add_u32 s26, s26, 16')
    a(f's_mul_i32 s27, s3, {CH_STRIDE}')
    srcoff = [0, 4224, -4, 4224 - 4]
    for i in range(5):
        if i == 4: a('s_mov_b64 exec, 0xff')
        for e in range(4):
            a(f's_add_u32 m0, s27, {COPY*e + 1024*i}')
            a(f's_add_u32 s28, s26, {srcoff[e] + 1024*i}' if srcoff[e] + 1024*i >= 0 else f's_sub_u32 s28, s26, {-(srcoff[e] + 1024*i)}')
            a('buffer_load_dwordx4 v3, s[8+4:8+7], s28 offen lds'.replace('8+4:8+7', '12:15'))
            vm.issue('k')
    a('s_mov_b64 exec, -1')
    a('s_lshl_b32 s28, s2, 14')
    a('v_lshlrev_b32 v4, 4, v0')
    NR = 48
    for q in range(4):
        a(f's_add_u32 s29, s28, {4096*q}')
        a(f'buffer_load_dwordx4 v[{NR+4*q}:{NR+4*q+3}], v4, s[8:11], s29 offen')
        vm.issue('n')
    for i in range(4): a(f'v_mov_b32 v{8+i}, 0')
    a('v_add_u32 v5, s27, v3')
    a('ds_write_b128 v5, v[8:11] offset:17152')
    a(f'ds_write_b128 v5, v[8:11] offset:{17152+1024}')
    a('s_mov_b64 exec, 0x3fffff')
    a(f'ds_write_b128 v5, v[8:11] offset:{17152+2048}')
    a('s_mov_b64 exec, -1')
    a('s_waitcnt lgkmcnt(0)')
    for c in range(4):
        src = 22 + (c >> 1)
        a(f's_lshl_b32 s38, s{src}, 16' if (c & 1) == 0 else f's_and_b32 s38, s{src}, 0xffff0000')
        a(f'v_add_f32 v{12+c}, 1.0, s38')
        src = 20 + (c >> 1)
        a(f's_lshl_b32 s{30+c}, s{src}, 16' if (c & 1) == 0 else f's_and_b32 s{30+c}, s{src}, 0xffff0000')
        src = 24 + (c >> 1)
        a(f's_lshl_b32 s{34+c}, s{src}, 16' if (c & 1) == 0 else f's_and_b32 s{34+c}, s{src}, 0xffff0000')
    for c in range(4): bf16_round_f32(a, 12+c, 12+c)
    a('v_lshrrev_b32 v6, 5, v0')
    a('v_mul_u32_u24 v6, 160, v6')
    a('v_and_b32 v7, 31, v0')
    a('v_lshl_add_u32 v6, v7, 2, v6')
    a(f'v_add_u32 v6, {UOFF}, v6')
    a(f'v_add_u32 v7, {2*CH_STRIDE}, v6')
    U = 64; PK = 72
    vm.wait('n')
    for q in range(4):
        r = NR + 4*q
        unpack2(a, U+0, U+1, r); unpack2(a, U+2, U+3, r+1); unpack2(a, U+4, U+5, r+2); unpack2(a, U+6, U+7, r+3)
        for c in range(4):
            a(f'v_fma_f32 v{U+c}, v{U+c}, v{12+c}, s{30+c}')
            a(f'v_fma_f32 v{U+4+c}, v{U+4+c}, v{12+c}, s{30+c}')
        for c in range(4):
            a(f'v_cvt_pk_bf16_f32 v{PK+c}, v{U+c}, v{U+4+c}')
        for c in range(4):
            base = 6 if c < 2 else 7
            a(f'ds_write_b32 v{base}, v{PK+c} offset:{(c&1)*CH_STRIDE + 1280*q}')
    a('v_and_b32 v8, 15, v1')
    a('v_lshrrev_b32 v9, 4, v1')
    a('v_lshrrev_b32 v10, 2, v8')
    a(f'v_mul_u32_u24 v10, {COPY}, v10')
    a('v_and_b32 v11, 3, v1')
    a('v_lshl_add_u32 v10, v11, 3, v10')
    a('v_lshlrev_b32 v11, 4, v9')
    a('v_sub_u32 v10, v10, v11')
    a(f'v_add_u32 v10, {128-72}, v10')
    a('v_add_u32 v10, s27, v10')
    a('v_mul_u32_u24 v11, 160, v8')
    a('v_lshl_add_u32 v11, v9, 4, v11')
    a(f'v_add_u32 v11, {UOFF-2400}, v11')
    a('v_add_u32 v11, s27, v11')
    a('s_waitcnt vmcnt(0) lgkmcnt(0)')
    vm.q = []
    a('s_barrier')
    ACC = 16; TS = [48, 88]; VB = 128
    def treg(s, m): return TS[s] + 4 * (m % 10)
    def tread(s, m):
        r = treg(s, m)
        return [f'ds_read_b64_tr_b16 v[{r}:{r+1}], v10 offset:{32*m+72}',
                f'ds_read_b64_tr_b16 v[{r+2}:{r+3}], v10 offset:{32*m+64}']
    def vreg(par, which, ks): return VB + 16*par + 8*which + 4*ks
    def vread(par, which, m, ks):
        r = vreg(par, which, ks)
        return f'ds_read_b128 v[{r}:{r+3}], v11 offset:{(15+m)*160+64*ks}'
    init = []
    for m in range(-2, 4): init += tread(0, m)
    for ks in range(2): init.append(vread(0, 0, 16, ks)); init.append(vread(0, 1, 0, ks))
    for m in range(62, 68): init += tread(1, m)
    for x in init: a(x)
    first = {}
    for j in range(16):
        par = j & 1
        a('s_waitcnt lgkmcnt(0)')
        reads = []
        if j < 15:
            for m in range(4*(j+1), 4*(j+1)+4): reads += tread(0, m)
            for ks in range(2):
                reads.append(vread(par ^ 1, 0, 16-(j+1), ks)); reads.append(vread(par ^ 1, 1, -(j+1), ks))
            for m in range(4*(j+17), 4*(j+17)+4): reads += tread(1, m)
        mf = []
        for (tau, s, J, which) in ((1, 0, j, 0), (0, 0, j, 1), (1, 1, j+16, 1)):
            for ks in range(2):
                for p in range(4):
                    d = ACC + 16*tau + 4*p
                    t = treg(s, 4*J + p - 2*ks); v = vreg(par, which, ks)
                    c = f'v[{d}:{d+3}]' if first.get(d) else '0'
                    first[d] = True
                    mf.append(f'v_mfma_f32_16x16x32_bf16 v[{d}:{d+3}], v[{t}:{t+3}], v[{v}:{v+3}], {c}')
        ri = 0
        for i, x in enumerate(mf):
            a(x)
            if ri < len(reads): a(reads[ri]); ri += 1
            if i < 2 and ri < len(reads): a(reads[ri]); ri += 1
        assert ri == len(reads)
    a('v_mul_u32_u24 v12, 160, v8')
    a('v_lshl_add_u32 v12, v9, 3, v12')
    a(f'v_add_u32 v12, {UOFF}, v12')
    a('v_add_u32 v12, s27, v12')
    HR = 48
    for tau in range(2):
        for p in range(4):
            i = 4*tau + p
            a(f'ds_read_b64 v[{HR+2*i}:{HR+2*i+1}], v12 offset:{2560*tau + 32*p}')
    a('s_cmp_eq_u32 s3, 1'); a('s_cselect_b32 s40, s35, s34')
    a('s_cmp_eq_u32 s3, 2'); a('s_cselect_b32 s40, s36, s40')
    a('s_cmp_eq_u32 s3, 3'); a('s_cselect_b32 s40, s37, s40')
    a('s_nop 4')
    YB = 64; HU = 96
    for i in range(8):
        d = ACC + 4*i
        a(f'v_cvt_pk_bf16_f32 v{YB+2*i}, v{d}, v{d+1}')
        a(f'v_cvt_pk_bf16_f32 v{YB+2*i+1}, v{d+2}, v{d+3}')
    a('s_waitcnt lgkmcnt(0)')
    for i in range(16):
        unpack2(a, HU, HU+1, HR+i)
        unpack2(a, HU+2, HU+3, YB+i)
        a(f'v_mul_f32 v{HU}, s40, v{HU}')
        a(f'v_mul_f32 v{HU+1}, s40, v{HU+1}')
        a(f'v_cvt_pk_bf16_f32 v{HU}, v{HU}, v{HU+1}')
        unpack2(a, HU+4, HU+5, HU)
        a(f'v_add_f32 v{HU+2}, v{HU+2}, v{HU+4}')
        a(f'v_add_f32 v{HU+3}, v{HU+3}, v{HU+5}')
        a(f'v_cvt_pk_bf16_f32 v{YB+i}, v{HU+2}, v{HU+3}')
    for tau in range(2):
        for p in range(4):
            i = 4*tau + p
            a(f'ds_write_b64 v12, v[{YB+2*i}:{YB+2*i+1}] offset:{2560*tau + 32*p}')
    a('s_waitcnt lgkmcnt(0)')
    a('s_barrier')
    ZR = 16
    for q in range(4):
        for c in range(4):
            base = 6 if c < 2 else 7
            a(f'ds_read_b32 v{ZR+4*q+c}, v{base} offset:{(c&1)*CH_STRIDE + 1280*q}')
    srd(a, 8, 4, OFF['Z'], SZ['Z'])
    a('s_mov_b32 s26, 0x05040100')
    a('s_mov_b32 s27, 0x07060302')
    OZ = 48
    for q in range(4):
        a(f's_waitcnt lgkmcnt({min(15, 12-4*q)})')
        r = ZR + 4*q; o = OZ + 4*q
        a(f'v_perm_b32 v{o}, v{r+1}, v{r}, s26')
        a(f'v_perm_b32 v{o+1}, v{r+3}, v{r+2}, s26')
        a(f'v_perm_b32 v{o+2}, v{r+1}, v{r}, s27')
        a(f'v_perm_b32 v{o+3}, v{r+3}, v{r+2}, s27')
        a(f's_add_u32 s29, s28, {4096*q}')
        a(f'buffer_store_dwordx4 v[{o}:{o+3}], v4, s[8:11], s29 offen')
    a('s_endpgm')

def gen_k2(name='conv_kernel'):
    a = Asm()
    kernel_head(a, name)
    a(f's_cmp_lt_u32 s2, {K2_CONV}')
    a('s_cbranch_scc1 K2_CONV')
    a(f's_sub_u32 s2, s2, {K2_CONV}')
    a(f's_cmp_lt_u32 s2, {K2_W1}')
    a('s_cbranch_scc1 K2_W1')
    a('s_endpgm')
    a.label('K2_CONV'); role_conv(a)
    a.label('K2_W1'); role_w1(a)
    return a, (name, K2_GRID, 256, K2_LDS), kernel_desc(name, 168, 168)
```

```python
from gen_common import *

def gen_k3(name='ln2_kernel'):
    a = Asm()
    kernel_head(a, name)
    a('s_cmp_ge_u32 s2, 256')
    a('s_cbranch_scc1 K3_END')
    a(f's_load_dwordx2 s[4:5], s[0:1], {KA_A_U}')
    a(f's_load_dwordx2 s[6:7], s[0:1], {KA_WS}')
    a('v_and_b32 v1, 63, v0')
    a('v_lshrrev_b32 v2, 6, v0')
    a('v_and_b32 v3, 7, v1')
    a('v_lshrrev_b32 v4, 3, v1')
    a('v_lshl_add_u32 v4, v2, 3, v4')
    a('s_lshl_b32 s3, s2, 3')
    a('v_add_u32 v5, s3, v3')
    a('v_mul_u32_u24 v6, 1152, v5')
    a('v_lshl_add_u32 v6, v4, 4, v6')
    a('v_lshlrev_b32 v7, 15, v4')
    a('v_lshl_add_u32 v7, v5, 3, v7')
    a('v_add_u32 v8, 16384, v7')
    a('v_lshlrev_b32 v9, 4, v4')
    a('s_waitcnt lgkmcnt(0)')
    srd(a, 8, 4, 0, 2048 * 1152)
    srd(a, 12, 6, OFF['Z'], SZ['Z'])
    srd(a, 16, 6, OFF['MOD'], SZ['MOD'])
    srd(a, 20, 6, OFF['X1'], SZ['X1'])
    srd(a, 24, 6, OFF['H2F'], SZ['H2F'])
    X, Z, GA, CB, SB = 12, 16, 20, 24, 28
    a(f'buffer_load_dwordx2 v[{Z}:{Z+1}], v7, s[12:15], 0 offen')
    a(f'buffer_load_dwordx2 v[{Z+2}:{Z+3}], v8, s[12:15], 0 offen')
    a(f'buffer_load_dwordx4 v[{X}:{X+3}], v6, s[8:11], 0 offen')
    a(f'buffer_load_dwordx4 v[{GA}:{GA+3}], v9, s[16:19], 0 offen offset:{2*2*576}')
    a('s_mov_b32 s28, 4608')
    a(f'buffer_load_dwordx4 v[{CB}:{CB+3}], v9, s[16:19], s28 offen')
    a(f'buffer_load_dwordx4 v[{SB}:{SB+3}], v9, s[16:19], 0 offen offset:{2*3*576}')
    a('v_lshrrev_b32 v10, 5, v5')
    a('v_mul_u32_u24 v10, 36, v10')
    a('v_lshrrev_b32 v11, 1, v4')
    a('v_add_u32 v10, v10, v11')
    a('v_lshlrev_b32 v10, 10, v10')
    a('v_and_b32 v11, 1, v4')
    a('v_lshlrev_b32 v11, 5, v11')
    a('v_and_b32 v32, 31, v5')
    a('v_add_u32 v11, v11, v32')
    a('v_lshl_add_u32 v10, v11, 4, v10')
    UX, UZ, UG = 32, 40, 48
    a('s_waitcnt vmcnt(2)')
    for k in range(4):
        unpack2(a, UX+2*k, UX+2*k+1, X+k); unpack2(a, UZ+2*k, UZ+2*k+1, Z+k); unpack2(a, UG+2*k, UG+2*k+1, GA+k)
    for k in range(4):
        a(f'v_pk_mul_f32 v[{UZ+2*k}:{UZ+2*k+1}], v[{UZ+2*k}:{UZ+2*k+1}], v[{UG+2*k}:{UG+2*k+1}]')
    for k in range(4): a(f'v_cvt_pk_bf16_f32 v{Z+k}, v{UZ+2*k}, v{UZ+2*k+1}')
    for k in range(4): unpack2(a, UZ+2*k, UZ+2*k+1, Z+k)
    for k in range(4):
        a(f'v_pk_add_f32 v[{UX+2*k}:{UX+2*k+1}], v[{UX+2*k}:{UX+2*k+1}], v[{UZ+2*k}:{UZ+2*k+1}]')
    for k in range(4): a(f'v_cvt_pk_bf16_f32 v{X+k}, v{UX+2*k}, v{UX+2*k+1}')
    a(f'buffer_store_dwordx4 v[{X}:{X+3}], v6, s[20:23], 0 offen')
    for k in range(4): unpack2(a, UX+2*k, UX+2*k+1, X+k)
    A1, A2 = 56, 58
    a(f'v_pk_add_f32 v[{A1}:{A1+1}], v[{UX}:{UX+1}], v[{UX+2}:{UX+3}]')
    a(f'v_pk_mul_f32 v[{A2}:{A2+1}], v[{UX}:{UX+1}], v[{UX}:{UX+1}]')
    a(f'v_pk_add_f32 v[{A1}:{A1+1}], v[{A1}:{A1+1}], v[{UX+4}:{UX+5}]')
    a(f'v_pk_add_f32 v[{A1}:{A1+1}], v[{A1}:{A1+1}], v[{UX+6}:{UX+7}]')
    for k in range(1, 4):
        a(f'v_pk_fma_f32 v[{A2}:{A2+1}], v[{UX+2*k}:{UX+2*k+1}], v[{UX+2*k}:{UX+2*k+1}], v[{A2}:{A2+1}]')
    a(f'v_add_f32 v{A1}, v{A1}, v{A1+1}')
    a(f'v_add_f32 v{A1+1}, v{A2}, v{A2+1}')
    xreduce_8_16_32(a, [A1, A1+1], [60, 61])
    a('v_lshlrev_b32 v11, 3, v3')
    a('v_lshl_add_u32 v60, v2, 6, v11')
    a('s_mov_b64 exec, 0xff')
    a(f'ds_write_b64 v60, v[{A1}:{A1+1}]')
    a('s_mov_b64 exec, -1')
    a('s_waitcnt lgkmcnt(0)')
    a('s_barrier')
    RR = 64
    for w in range(9): a(f'ds_read_b64 v[{RR+2*w}:{RR+2*w+1}], v11 offset:{64*w}')
    a('s_waitcnt vmcnt(1)')
    UC, US = 40, 48
    for k in range(4): unpack2(a, UC+2*k, UC+2*k+1, CB+k); unpack2(a, US+2*k, US+2*k+1, SB+k)
    for k in range(4): a(f'v_pk_add_f32 v[{UC+2*k}:{UC+2*k+1}], v[{UC+2*k}:{UC+2*k+1}], 1.0 op_sel_hi:[1,0]')
    for k in range(4): a(f'v_cvt_pk_bf16_f32 v{CB+k}, v{UC+2*k}, v{UC+2*k+1}')
    for k in range(4): unpack2(a, UC+2*k, UC+2*k+1, CB+k)
    a('s_waitcnt lgkmcnt(0)')
    for w in range(1, 9):
        a(f'v_pk_add_f32 v[{RR}:{RR+1}], v[{RR}:{RR+1}], v[{RR+2*w}:{RR+2*w+1}]')
    RS, M = 84, 86
    ln_finish(a, RR, RR+1, M, RS, 60, 61)
    for k in range(4):
        u = UX + 2*k
        a(f'v_pk_fma_f32 v[{u}:{u+1}], v[{u}:{u+1}], v[{RS}:{RS+1}], v[{M}:{M+1}] op_sel_hi:[1,0,0]')
    for k in range(4):
        u = UX + 2*k
        a(f'v_pk_fma_f32 v[{u}:{u+1}], v[{u}:{u+1}], v[{UC+2*k}:{UC+2*k+1}], v[{US+2*k}:{US+2*k+1}]')
    for k in range(4): a(f'v_cvt_pk_bf16_f32 v{Z+k}, v{UX+2*k}, v{UX+2*k+1}')
    a(f'buffer_store_dwordx4 v[{Z}:{Z+3}], v10, s[24:27], 0 offen')
    a.label('K3_END')
    a('s_endpgm')
    return a, (name, 256, 576, 1024), kernel_desc(name, 88, 88)

def gen_k6(name='final_kernel'):
    a = Asm()
    kernel_head(a, name)
    a('s_cmp_ge_u32 s2, 256')
    a('s_cbranch_scc1 K6_END')
    a(f's_load_dwordx2 s[4:5], s[0:1], {KA_OUT}')
    a(f's_load_dwordx2 s[6:7], s[0:1], {KA_WS}')
    a('s_mul_i32 s3, s2, 9216')
    a('v_lshl_add_u32 v1, v0, 4, s3')
    a('v_mul_u32_u24 v2, 911, v0')
    a('v_lshrrev_b32 v2, 16, v2')
    a('v_mul_u32_u24 v2, 72, v2')
    a('v_sub_u32 v2, v0, v2')
    a('v_lshlrev_b32 v2, 4, v2')
    a('s_waitcnt lgkmcnt(0)')
    srd(a, 8, 4, 0, 2048 * 1152)
    srd(a, 12, 6, OFF['P'], SZ['P'])
    srd(a, 16, 6, OFF['MOD'], SZ['MOD'])
    srd(a, 20, 6, OFF['X1'], SZ['X1'])
    P = 4
    for s in range(4):
        a(f's_mov_b32 s24, {s*2359296}')
        a(f'buffer_load_dwordx4 v[{P+4*s}:{P+4*s+3}], v1, s[12:15], s24 offen')
    a('s_mov_b32 s24, 5760')
    a('buffer_load_dwordx4 v[20:23], v2, s[16:19], s24 offen')
    a('buffer_load_dwordx4 v[24:27], v1, s[20:23], 0 offen')
    U = 28; V = 36
    a('s_waitcnt vmcnt(5)')
    for k in range(4): unpack2(a, U+2*k, U+2*k+1, P+k)
    for s in range(1, 4):
        a(f's_waitcnt vmcnt({5-s})')
        for k in range(4): unpack2(a, V+2*k, V+2*k+1, P+4*s+k)
        for k in range(4): a(f'v_pk_add_f32 v[{U+2*k}:{U+2*k+1}], v[{U+2*k}:{U+2*k+1}], v[{V+2*k}:{V+2*k+1}]')
    for k in range(4): a(f'v_cvt_pk_bf16_f32 v{P+k}, v{U+2*k}, v{U+2*k+1}')
    for k in range(4): unpack2(a, U+2*k, U+2*k+1, P+k)
    a('s_waitcnt vmcnt(1)')
    for k in range(4): unpack2(a, V+2*k, V+2*k+1, 20+k)
    for k in range(4): a(f'v_pk_mul_f32 v[{U+2*k}:{U+2*k+1}], v[{U+2*k}:{U+2*k+1}], v[{V+2*k}:{V+2*k+1}]')
    for k in range(4): a(f'v_cvt_pk_bf16_f32 v{P+k}, v{U+2*k}, v{U+2*k+1}')
    for k in range(4): unpack2(a, U+2*k, U+2*k+1, P+k)
    a('s_waitcnt vmcnt(0)')
    for k in range(4): unpack2(a, V+2*k, V+2*k+1, 24+k)
    for k in range(4): a(f'v_pk_add_f32 v[{U+2*k}:{U+2*k+1}], v[{U+2*k}:{U+2*k+1}], v[{V+2*k}:{V+2*k+1}]')
    for k in range(4): a(f'v_cvt_pk_bf16_f32 v{P+k}, v{U+2*k}, v{U+2*k+1}')
    a(f'buffer_store_dwordx4 v[{P}:{P+3}], v1, s[8:11], 0 offen')
    a.label('K6_END')
    a('s_endpgm')
    return a, (name, 256, 576, 0), kernel_desc(name, 44, 44)
```

```python
from gen_common import *
import math

SLOT = 36864
C0 = -2.0 * math.sqrt(2.0 / math.pi) * math.log2(math.e)
C1 = C0 * 0.044715

def cost(ins):
    op = ins.split()[0]
    if op in TRANS: return 8
    return 4

class Fill:
    def __init__(self, a): self.a = a; self.q = []
    def push(self, items, tag=None, not_before=0):
        for it in items:
            for x in (it if isinstance(it, list) else [it]): self.q.append(([x], tag, not_before))
    def pop(self, budget, now, vm=None):
        while self.q:
            grp, tag, nb = self.q[0]
            if nb > now: break
            c = sum(cost(x) for x in grp)
            if c > budget: break
            budget -= c
            self.q.pop(0)
            for x in grp:
                self.a(x)
                if vm is not None and x.startswith('buffer_'): vm.issue(tag)
        return budget
    def flush(self, vm=None):
        self.pop(10**9, 10**9, vm)
    def pending(self, tag): return any(t == tag for _, t, _ in self.q)

def gen_k4(name='gemm1_kernel', st_flags=''):
    a = Asm()
    kernel_head(a, name)
    a('s_cmp_ge_u32 s2, 256')
    a('s_cbranch_scc1 K4_END')
    a(f's_load_dwordx2 s[4:5], s[0:1], {KA_WS}')
    a('v_and_b32 v9, 63, v0')
    a('v_lshrrev_b32 v10, 6, v0')
    a('s_nop 0')
    a('v_readfirstlane_b32 s3, v10')
    a('s_and_b32 s6, s2, 7')
    a('s_lshr_b32 s7, s2, 3')
    a('s_and_b32 s16, s7, 3')
    a('s_lshl_b32 s6, s6, 2')
    a('s_add_u32 s6, s6, s16')
    a('s_lshr_b32 s7, s7, 2')
    a('v_lshlrev_b32 v1, 4, v9')
    for s in range(4): a(f'v_add_u32 v{2+s}, {s*SLOT}, v1')
    a('v_and_b32 v10, 31, v9')
    a('v_lshrrev_b32 v11, 5, v9')
    a('v_lshrrev_b32 v12, 4, v10')
    a('s_lshl_b32 s17, s7, 4')
    a('s_lshl_b32 s18, s3, 2')
    a('s_add_u32 s17, s17, s18')
    a('v_add_u32 v12, s17, v12')
    a(f'v_mul_u32_u24 v12, {144}, v12')
    a('v_lshlrev_b32 v12, 10, v12')
    a('v_and_b32 v10, 15, v10')
    a('v_lshl_add_u32 v10, v11, 4, v10')
    a('v_lshl_add_u32 v6, v10, 4, v12')
    a(f'v_mov_b32 v7, {flit(C0)}')
    a(f'v_mov_b32 v8, {flit(C1)}')
    a(f's_mul_i32 s20, s6, {9*SLOT}')
    a('s_lshl_b32 s21, s3, 10')
    a('s_add_u32 s22, s20, s21')
    a('s_mul_i32 s23, s3, 9216')
    a('s_add_u32 s24, s20, s23')
    a('s_lshl_b32 s25, s7, 3')
    a('s_lshl_b32 s26, s3, 1')
    a('s_add_u32 s25, s25, s26')
    a(f's_mul_i32 s25, s25, {SLOT}')
    a(f's_mul_i32 s26, s6, {9*512}')
    a('s_waitcnt lgkmcnt(0)')
    srd(a, 8, 4, OFF['W1T'], SZ['W1T'])
    srd(a, 12, 4, OFF['H2F'], SZ['H2F'])
    srd(a, 16, 4, OFF['HF'], SZ['HF'])
    vm = VM(a)
    fill = Fill(a)
    PK, TT, WB, SV, ACC = 12, 20, 36, 60, 92
    def sreg(tb, ks):
        i = 2*ks + tb
        return f'a[{4*i}:{4*i+3}]' if i < 64 else f'v[{SV+4*(i-64)}:{SV+4*(i-64)+3}]'
    def acc(b, tb): return ACC + 32*(b % 4) + 16*tb
    def wbuf(i): return WB + 4*i
    def group_loads(G):
        out = []
        for b in range(3):
            out.append([f's_add_u32 m0, s21, {b*SLOT + 4096*G}',
                        f's_add_u32 s27, s22, {b*SLOT + 4096*G}',
                        'buffer_load_dwordx4 v1, s[8:11], s27 offen lds'])
        for tb in range(2):
            for kl in range(4):
                g = []
                if kl == 0: g.append(f's_add_u32 s28, s25, {tb*SLOT + 4096*G}')
                g.append(f'buffer_load_dwordx4 {sreg(tb, 4*G+kl)}, v1, s[12:15], s28 offen offset:{1024*kl}')
                out.append(g)
        return out
    def block_dma(b):
        out = []
        slot = b % 4
        for i in range(9):
            g = []
            if i % 4 == 0:
                g.append(f's_add_u32 m0, s23, {slot*SLOT + 1024*i}')
                g.append(f's_add_u32 s27, s24, {b*SLOT + 1024*i}')
            g.append(f'buffer_load_dwordx4 v1, s[8:11], s27 offen offset:{1024*(i%4)} lds')
            out.append(g)
        return out
    def emit_now(groups, tag):
        for g in groups:
            for x in g:
                a(x)
                if x.startswith('buffer_'): vm.issue(tag)
    def epilogue(b):
        out = []
        for tb in range(2):
            A = acc(b, tb); T = TT + 8*tb; P = PK + 4*tb
            for r in range(8): out.append(f'v_mul_f32 v{T+r}, v{A+r}, v{A+r}')
            for r in range(8): out.append(f'v_fma_f32 v{T+r}, v{T+r}, v8, v7')
            for r in range(8): out.append(f'v_mul_f32 v{T+r}, v{T+r}, v{A+r}')
            for r in range(8): out.append(f'v_exp_f32 v{T+r}, v{T+r}')
            for r in range(8): out.append(f'v_mul_f32 v{A+8+r}, v{A+r}, v{A+8+r}')
            for r in range(8): out.append(f'v_add_f32 v{T+r}, 1.0, v{T+r}')
            for r in range(8): out.append(f'v_rcp_f32 v{T+r}, v{T+r}')
            for r in range(8): out.append(f'v_mul_f32 v{T+r}, v{A+8+r}, v{T+r}')
            for k in range(4): out.append(f'v_cvt_pk_bf16_f32 v{P+k}, v{T+2*k}, v{T+2*k+1}')
            out.append([f's_add_u32 s29, s26, {512*b + 294912*tb}',
                        f'buffer_store_dwordx4 v[{P}:{P+3}], v6, s[16:19], s29 offen {st_flags}'.strip()])
        return out
    for G in range(5): emit_now(group_loads(G), f'G{G}')
    vm.wait('G0')
    a('s_barrier')
    nm = 0
    def wread(buf, slot, ks): return f'ds_read_b128 v[{wbuf(buf)}:{wbuf(buf)+3}], v{2+slot} offset:{1024*ks}'
    def mfma(b, tb, ks, buf):
        d = acc(b, tb)
        c = '0' if ks == 0 else f'v[{d}:{d+15}]'
        return f'v_mfma_f32_32x32x16_bf16 v[{d}:{d+15}], v[{wbuf(buf)}:{wbuf(buf)+3}], {sreg(tb, ks)}, {c}'
    for b in range(3): a(wread(b, b, 0))
    fill.push(group_loads(5), 'G5')
    for ks in range(36):
        a('s_waitcnt lgkmcnt(0)')
        pre = []
        nxt = ks + 1
        if nxt < 36 and nxt % 4 == 0:
            G = nxt // 4
            assert not fill.pending(f'G{G}')
            vm.wait(f'G{G}')
            a('s_barrier')
            if G + 5 <= 8: fill.push(group_loads(G+5), f'G{G+5}')
            elif G + 5 == 9: fill.push(block_dma(3), 'W3')
        if ks == 35:
            assert not fill.pending('W3')
            vm.wait('W3')
            a('s_barrier')
            reads = [wread(i, 3, i) for i in range(3)]
            fill.push(block_dma(4), 'W4'); fill.push(block_dma(5), 'W5'); fill.push(block_dma(6), 'W6')
        else:
            sset = 3 * (nxt & 1)
            reads = [wread(sset + b, b, nxt) for b in range(3)]
        cur = 3 * (ks & 1)
        ri = 0
        for b in range(3):
            for tb in range(2):
                a(mfma(b, tb, ks, cur + b)); nm += 1
                budget = 24
                if ri < 3: a(reads[ri]); ri += 1; budget -= 4
                fill.pop(budget, nm, vm)
    for b in range(3): fill.push(epilogue(b), f'E{b}', not_before=nm + 7)
    for b in range(3, 9):
        assert not fill.pending(f'E{b-4}'), f'acc set not free for block {b}'
        slot = b % 4
        for ks in range(36):
            kc = 36*(b-3) + ks
            budget = 24
            if ks == 32 and b < 8:
                assert not fill.pending(f'W{b+1}')
                vm.wait(f'W{b+1}')
                a('s_barrier')
                if b + 1 == 5: fill.push(block_dma(7), 'W7')
                if b + 1 == 6: fill.push(block_dma(8), 'W8')
            nk = ks + 3
            rd = None
            if nk < 36: rd = wread((kc+3) % 6, slot, nk)
            elif b < 8: rd = wread((kc+3) % 6, (b+1) % 4, nk - 36)
            if rd: a(rd)
            younger = 3 if rd else (35 - ks)
            a(f's_waitcnt lgkmcnt({younger})')
            a(mfma(b, 0, ks, kc % 6)); nm += 1
            fill.pop(24, nm, vm)
            a(mfma(b, 1, ks, kc % 6)); nm += 1
            fill.pop(24 - 8, nm, vm)
        fill.push(epilogue(b), f'E{b}', not_before=nm + 7)
    a('s_nop 7'); a('s_nop 3')
    fill.flush(vm)
    a.label('K4_END')
    a('s_endpgm')
    return a, (name, 256, 256, 4*SLOT), kernel_desc(name, 220 + 256, 220)
```

```python
from gen_common import *
from gen_k4 import Fill, SLOT

def gen_k5(name='gemm2_kernel', st_flags=''):
    a = Asm()
    kernel_head(a, name)
    a('s_cmp_ge_u32 s2, 256')
    a('s_cbranch_scc1 K5_END')
    a(f's_load_dwordx2 s[4:5], s[0:1], {KA_WS}')
    a('v_and_b32 v9, 63, v0')
    a('v_lshrrev_b32 v10, 6, v0')
    a('s_nop 0')
    a('v_readfirstlane_b32 s3, v10')
    a('s_and_b32 s6, s2, 7')
    a('s_lshr_b32 s7, s2, 3')
    a('s_and_b32 s30, s6, 3')
    a('s_lshr_b32 s31, s6, 2')
    a('s_lshl_b32 s31, s31, 3')
    a('s_and_b32 s16, s7, 7')
    a('s_add_u32 s31, s31, s16')
    a('s_lshr_b32 s32, s7, 3')
    a('v_lshlrev_b32 v1, 4, v9')
    for s in range(4): a(f'v_add_u32 v{2+s}, {s*SLOT}, v1')
    a('s_mul_i32 s20, s32, 144')
    a('s_mul_i32 s21, s30, 36')
    a('s_add_u32 s20, s20, s21')
    a('s_mul_i32 s20, s20, 9216')
    a('s_mul_i32 s23, s3, 9216')
    a('s_add_u32 s24, s20, s23')
    a('s_lshl_b32 s25, s31, 3')
    a('s_lshl_b32 s26, s3, 1')
    a('s_add_u32 s25, s25, s26')
    a('s_mul_i32 s25, s25, 147456')
    a('s_lshl_b32 s21, s21, 10')
    a('s_add_u32 s25, s25, s21')
    a('v_and_b32 v10, 15, v9')
    a('v_lshrrev_b32 v11, 4, v9')
    a('s_lshl_b32 s26, s31, 7')
    a('s_lshl_b32 s27, s3, 5')
    a('s_add_u32 s26, s26, s27')
    a('v_add_u32 v10, s26, v10')
    a('v_mul_u32_u24 v10, 1152, v10')
    a('v_lshl_add_u32 v6, v11, 4, v10')
    a('v_lshl_add_u32 v7, v11, 3, v10')
    a('v_add_u32 v7, 256, v7')
    a('s_mul_i32 s26, s30, 2359296')
    a('s_mul_i32 s27, s32, 288')
    a('s_add_u32 s26, s26, s27')
    a('s_waitcnt lgkmcnt(0)')
    srd(a, 8, 4, OFF['WDT'], SZ['WDT'])
    srd(a, 12, 4, OFF['HF'], SZ['HF'])
    srd(a, 16, 4, OFF['P'], SZ['P'])
    vm = VM(a); fill = Fill(a)
    AB, ACC, PK = 12, 44, 116
    NB, DIST = 8, 5
    def hreg(st, kl, tb):
        r = 32*(st % 6) + 8*kl + 4*tb
        return f'a[{r}:{r+3}]'
    def acc(tb, b): return ACC + 36*tb + 4*b
    def abuf(i): return AB + 4*(i % NB)
    def w_loads(st):
        out = []
        slot = st % 4
        for i in range(9):
            g = []
            if i % 4 == 0:
                g.append(f's_add_u32 m0, s23, {slot*SLOT + 1024*i}')
                g.append(f's_add_u32 s27, s24, {st*SLOT + 1024*i}')
            g.append(f'buffer_load_dwordx4 v1, s[8:11], s27 offen offset:{1024*(i%4)} lds')
            out.append(g)
        return out
    def h_loads(st):
        out = []
        for tb in range(2):
            for kl in range(4):
                g = []
                if kl == 0: g.append(f's_add_u32 s28, s25, {tb*147456 + 4096*st}')
                g.append(f'buffer_load_dwordx4 {hreg(st, kl, tb)}, v1, s[12:15], s28 offen offset:{1024*kl}')
                out.append(g)
        return out
    def emit_now(groups, tag):
        for g in groups:
            for x in g:
                a(x)
                if x.startswith('buffer_'): vm.issue(tag)
    for st in range(3): emit_now(w_loads(st), f'W{st}'); emit_now(h_loads(st), f'H{st}')
    emit_now(h_loads(3), 'H3')
    vm.wait('H0')
    a('s_barrier')
    def aread(q):
        st, fi = divmod(q, 36)
        r = abuf(q)
        return f'ds_read_b128 v[{r}:{r+3}], v{2 + st % 4} offset:{1024*fi}'
    for q in range(DIST): a(aread(q))
    fill.push(w_loads(3), 'W3'); fill.push(h_loads(4), 'H4')
    nm = 0
    NQ = 9*36
    for q in range(NQ):
        st, fi = divmod(q, 36)
        kl, b = divmod(fi, 9)
        nq = q + DIST
        if nq < NQ and nq % 36 == 0:
            ns = nq // 36
            assert not fill.pending(f'W{ns}') and not fill.pending(f'H{ns}')
            later = f'W{ns}'
            iw = max([i for i, t in enumerate(vm.q) if t == f'W{ns}'], default=-1)
            ih = max([i for i, t in enumerate(vm.q) if t == f'H{ns}'], default=-1)
            if ih > iw: later = f'H{ns}'
            vm.wait(later)
            a('s_barrier')
            if ns >= 2 and ns + 2 <= 8: fill.push(w_loads(ns + 2), f'W{ns+2}')
            if ns + 4 <= 8: fill.push(h_loads(ns + 4), f'H{ns+4}')
        if nq < NQ: a(aread(nq))
        younger = min(DIST, NQ - 1 - q)
        a(f's_waitcnt lgkmcnt({younger})')
        for tb in range(2):
            d = acc(tb, b)
            c = '0' if (st == 0 and kl == 0) else f'v[{d}:{d+3}]'
            a(f'v_mfma_f32_16x16x32_bf16 v[{d}:{d+3}], v[{abuf(q)}:{abuf(q)+3}], {hreg(st, kl, tb)}, {c}'); nm += 1
            fill.pop(8 if tb == 0 else 4, nm, vm)
    a('s_nop 7')
    for tb in range(2):
        a(f's_add_u32 s29, s26, {tb*16*1152}')
        for mp in range(4):
            p = PK + 4*((tb*5 + mp) % 4)
            b0, b1 = acc(tb, 2*mp), acc(tb, 2*mp+1)
            a(f'v_cvt_pk_bf16_f32 v{p}, v{b0}, v{b0+1}')
            a(f'v_cvt_pk_bf16_f32 v{p+1}, v{b0+2}, v{b0+3}')
            a(f'v_cvt_pk_bf16_f32 v{p+2}, v{b1}, v{b1+1}')
            a(f'v_cvt_pk_bf16_f32 v{p+3}, v{b1+2}, v{b1+3}')
            a(f'buffer_store_dwordx4 v[{p}:{p+3}], v6, s[16:19], s29 offen offset:{64*mp} {st_flags}'.strip())
        p = PK + 16
        b0 = acc(tb, 8)
        a(f'v_cvt_pk_bf16_f32 v{p+2*tb}, v{b0}, v{b0+1}')
        a(f'v_cvt_pk_bf16_f32 v{p+2*tb+1}, v{b0+2}, v{b0+3}')
        a(f'buffer_store_dwordx2 v[{p+2*tb}:{p+2*tb+1}], v7, s[16:19], s29 offen {st_flags}'.strip())
    a.label('K5_END')
    a('s_endpgm')
    return a, (name, 256, 256, 4*SLOT), kernel_desc(name, 136 + 192, 136)
```

```python
L, D, N, F = 2048, 576, 128, 4608
def al(x, a=4096): return (x + a - 1) // a * a
off = {}
size = {}
cur = 0
def add(name, nbytes):
    global cur
    off[name] = cur; size[name] = nbytes; cur = al(cur + nbytes)
add('MOD', 3456 * 2)
add('NT', D * L * 2)
KA_STRIDE = 8448
add('KA', D * KA_STRIDE)
add('Z', D * L * 2)
add('X1', D * L * 2)
add('H2F', D * L * 2)
add('W1T', D * 2 * F * 2)
add('WDT', D * F * 2)
add('HF', L * F * 2)
add('P', 4 * L * D * 2)
TOTAL = cur
if __name__ == '__main__':
    for k in off: print(k, off[k], size[k])
    print(TOTAL)
```

```python
import sys, asmlib
import gen_k1, gen_k2, gen_k3, gen_k4, gen_k5
HEADER = open('adaLN_cond__ssm_conv_s4__geglu_ffn__prompt.s.ref').read().split('; Override launch geometry')[0]
def build(kernels, path):
    out = [HEADER.rstrip('\n')]
    for a, (name, grid, block, lds), desc in kernels:
        out.append(f'; @launch kernel={name} grid=({grid},1,1) block=({block},1,1) lds={lds}')
    out.append('.amdgcn_target "amdgcn-amd-amdhsa--gfx950"')
    out.append('.text')
    nprob = 0
    for a, l, desc in kernels:
        probs = asmlib.check(a.lines, l[0])
        for p in probs: print(p)
        nprob += len(probs)
        out.append(a.text())
    out.append('.section .rodata,"a"')
    for a, l, desc in kernels:
        out.append('.p2align 6')
        out.append(desc)
    open(path, 'w').write('\n'.join(out) + '\n')
    print('wrote', path, 'problems', nprob)
if __name__ == '__main__':
    path = sys.argv[1] if len(sys.argv) > 1 else 'adaLN_cond__ssm_conv_s4__geglu_ffn__prompt.s'
    ks = [gen_k1.gen_k1(), gen_k2.gen_k2(), gen_k3.gen_k3(), gen_k4.gen_k4(), gen_k5.gen_k5(), gen_k3.gen_k6()]
    build(ks, path)
```
